```python
import torch

def _softmax(x, axis=-1):
    return torch.softmax(x, dim=axis)
def _gelu(x):
    return torch.nn.functional.gelu(x, approximate="tanh")
def _silu(x):
    return torch.nn.functional.silu(x)
def _sigmoid(x):
    return torch.sigmoid(x)
def _layernorm(x, axis=-1, eps=1e-5):
    m = x.mean(dim=axis, keepdim=True)
    v = x.var(dim=axis, keepdim=True, unbiased=False)
    return (x - m) / torch.sqrt(v + eps)
def _scatter_add(tgt, idx, src, axis=0):
    return tgt.clone().index_add_(axis, idx, src)
def _segment_sum(src, seg, n):
    out = torch.zeros((n,) + src.shape[1:], dtype=src.dtype)
    return out.index_add_(0, seg, src)
def _pad(x, pw):
    flat = tuple(v for pair in reversed(pw) for v in pair)
    return torch.nn.functional.pad(x, flat)

kernel_name = 'standalone__kv_cache_quant_int4_int2_kv_with_per_channel_or_per_token_scales__prompt'

def setup_inputs():

    _w = (lambda a: (lambda t: t.to(torch.bfloat16) if t.is_floating_point() else t)(torch.as_tensor(a)))
    B = 1
    Sq = 2048
    Skv = 2048
    Hq = 32
    Hkv = 4
    Dh = 128
    bits = 3
    G = -1
    if G <= 0 or G >= Skv:
        G = max(1, Skv // 2)
    Skv = (Skv // G) * G
    ngk = Skv // G
    qmax = (1 << bits) - 1
    return {
        "q": _w((lambda *s: torch.randn(*s, dtype=torch.bfloat16) * 1.6)(B, Hq, Sq, Dh)),
        "qk": _w(torch.randint(0, qmax + 1, (B, Hkv, Skv, Dh)).to(torch.int32)),
        "qv": _w(torch.randint(0, qmax + 1, (B, Hkv, Skv, Dh)).to(torch.int32)),
        "k_scales": _w(torch.abs((lambda *s: torch.randn(*s, dtype=torch.bfloat16) * 1.6)(B, Hkv, ngk, Dh)) * 0.05 + 0.02),
        "k_zeros": _w((lambda *s: torch.randn(*s, dtype=torch.bfloat16) * 1.6)(B, Hkv, ngk, Dh) + float(qmax) / 2.0),
        "v_scales": _w(torch.abs((lambda *s: torch.randn(*s, dtype=torch.bfloat16) * 0.05)(B, Hkv, Skv, 1)) * 0.05 + 0.02),
        "v_zeros": _w((lambda *s: torch.randn(*s, dtype=torch.bfloat16) * 0.05)(B, Hkv, Skv, 1) + float(qmax) / 2.0),
    }

def reference(q, qk, qv, k_scales, k_zeros, v_scales, v_zeros):
    B, Hq, Sq, Dh = q.shape
    Hkv, Skv = qk.shape[1], qk.shape[2]
    ngk = k_scales.shape[2]
    G = Skv // ngk
    ks = (lambda x, n, axis: torch.repeat_interleave(x, n, dim=axis))(k_scales, G, axis=2)
    kz = (lambda x, n, axis: torch.repeat_interleave(x, n, dim=axis))(k_zeros, G, axis=2)
    k = ((lambda x, dt: x.to(dt))(qk, q.dtype) - kz) * ks
    v = ((lambda x, dt: x.to(dt))(qv, q.dtype) - v_zeros) * v_scales
    rep = Hq // Hkv
    if rep > 1:
        k = (lambda x, n, axis: torch.repeat_interleave(x, n, dim=axis))(k, rep, axis=1)
        v = (lambda x, n, axis: torch.repeat_interleave(x, n, dim=axis))(v, rep, axis=1)
    scale = float(Dh) ** -0.5
    logits = torch.einsum("bhqd,bhkd->bhqk", q, k) * scale
    p = _softmax(logits, axis=-1)
    o = torch.einsum("bhqk,bhkd->bhqd", p, v)
    return o
```

```python
import sys, struct, math

KN = "standalone__kv_cache_quant_int4_int2_kv_with_per_channel_or_per_token_scales__prompt_kernel"
HEADER = """; Kernarg layout for this problem (80 bytes, ptrs only, base s[0:1]):
"""

opts = dict(NW=8, NF=8, THRLOG=16, stamp=0, wpair=1, prio=0, dmapos=2, dmastep=3, vend=6, barlead=1)
out = sys.argv[1]
for a in sys.argv[2:]:
    k, v = a.split("=")
    opts[k] = int(v)
o = type("O", (), opts)


def f32bits(x):
    return struct.unpack("<I", struct.pack("<f", x))[0]


CSCALE = (128.0 ** -0.5) * math.log2(math.e)

L = []
A = L.append


def srd(d, base, nbytes):
    A(f"s_mov_b32 s{d}, s{base}")
    A(f"s_mov_b32 s{d+1}, s{base+1}")
    A(f"s_mov_b32 s{d+2}, {nbytes}")
    A(f"s_mov_b32 s{d+3}, 0x20000")


def kernel_begin(name):
    A(f".globl {name}")
    A(".p2align 8")
    A(f".type {name},@function")
    A(f"{name}:")


def descriptor(name, nv, ns, ao, extra=()):
    A(".p2align 6")
    A(f".amdhsa_kernel {name}")
    A(f"  .amdhsa_next_free_vgpr {nv}")
    A(f"  .amdhsa_next_free_sgpr {ns}")
    A(f"  .amdhsa_accum_offset {ao}")
    A("  .amdhsa_group_segment_fixed_size 0")
    A("  .amdhsa_kernarg_size 80")
    A("  .amdhsa_user_sgpr_count 2")
    A("  .amdhsa_user_sgpr_kernarg_segment_ptr 1")
    A("  .amdhsa_system_sgpr_workgroup_id_x 1")
    for e in extra:
        A("  " + e)
    A(".end_amdhsa_kernel")


def round_pair(a, b, t):
    A(f"v_cvt_pk_bf16_f32 v{t}, v{a}, v{b}")
    A(f"v_lshlrev_b32 v{a}, 16, v{t}")
    A(f"v_and_b32 v{b}, 0xffff0000, v{t}")


def gen_dequant(name):
    kernel_begin(name)
    A("s_cmp_ge_u32 s2, 256")
    A("s_cbranch_scc1 Ldq_done")
    A("s_load_dwordx4 s[4:7], s[0:1], 8")
    A("s_load_dwordx8 s[8:15], s[0:1], 24")
    A("s_load_dwordx2 s[16:17], s[0:1], 72")
    A("v_lshrrev_b32 v1, 6, v0")
    A("v_and_b32 v2, 63, v0")
    A("v_readfirstlane_b32 s20, v1")
    A("s_and_b32 s21, s2, 7")
    A("s_lshr_b32 s22, s21, 1")
    A("s_and_b32 s23, s21, 1")
    A("s_lshr_b32 s24, s2, 3")
    A("s_lshl_b32 s25, s22, 5")
    A("s_add_u32 s25, s25, s24")
    A("s_lshl_b32 s25, s25, 15")
    A("s_lshl_b32 s26, s22, 20")
    A("s_lshl_b32 s27, s24, 15")
    A("s_add_u32 s26, s26, s27")
    A("s_waitcnt lgkmcnt(0)")
    srd(40, 16, 4 * 1024 * 1024)
    A("s_cmp_eq_u32 s23, 1")
    A("s_cbranch_scc1 Ldq_v")
    srd(28, 4, 4194304)
    srd(32, 8, 2048)
    srd(36, 10, 2048)
    A("s_lshr_b32 s44, s20, 1")
    A("s_and_b32 s45, s20, 1")
    A("s_lshl_b32 s46, s44, 13")
    A("s_add_u32 s46, s46, s26")
    A("s_lshl_b32 s47, s45, 8")
    A("s_add_u32 s46, s46, s47")
    A("v_and_b32 v3, 15, v2")
    A("v_lshrrev_b32 v4, 4, v2")
    A("v_lshlrev_b32 v3, 9, v3")
    A("v_lshl_add_u32 v3, v4, 5, v3")
    A("v_lshlrev_b32 v5, 4, v4")
    A("s_lshr_b32 s47, s24, 4")
    A("s_lshl_b32 s48, s22, 1")
    A("s_add_u32 s47, s47, s48")
    A("s_lshl_b32 s47, s47, 8")
    A("s_lshl_b32 s48, s45, 7")
    A("s_add_u32 s47, s47, s48")
    for i, off in enumerate((0, 16, 128, 144)):
        A(f"buffer_load_dwordx4 v[{8+4*i}:{11+4*i}], v3, s[28:31], s46 offen offset:{off}")
    for i in range(2):
        A(f"buffer_load_dwordx4 v[{24+4*i}:{27+4*i}], v5, s[32:35], s47 offen offset:{64*i}")
        A(f"buffer_load_dwordx4 v[{32+4*i}:{35+4*i}], v5, s[36:39], s47 offen offset:{64*i}")
    A("v_lshlrev_b32 v6, 4, v2")
    A("s_lshl_b32 s48, s20, 11")
    A("s_add_u32 s48, s48, s25")
    A(f"s_mov_b32 s49, 0x{f32bits(CSCALE):08x}")
    A("s_waitcnt vmcnt(0)")
    for f in range(2):
        for p in range(4):
            a, b = 8 + 8 * f + 2 * p, 9 + 8 * f + 2 * p
            sc, zr = 24 + 4 * f + p, 32 + 4 * f + p
            A(f"v_cvt_f32_i32 v{a}, v{a}")
            A(f"v_cvt_f32_i32 v{b}, v{b}")
            round_pair(a, b, 40)
            A(f"v_lshlrev_b32 v41, 16, v{zr}")
            A(f"v_and_b32 v42, 0xffff0000, v{zr}")
            A(f"v_sub_f32 v{a}, v{a}, v41")
            A(f"v_sub_f32 v{b}, v{b}, v42")
            round_pair(a, b, 40)
            A(f"v_lshlrev_b32 v41, 16, v{sc}")
            A(f"v_and_b32 v42, 0xffff0000, v{sc}")
            A(f"v_mul_f32 v{a}, v{a}, v41")
            A(f"v_mul_f32 v{b}, v{b}, v42")
            round_pair(a, b, 40)
            A(f"v_mul_f32 v{a}, s49, v{a}")
            A(f"v_mul_f32 v{b}, s49, v{b}")
            A(f"v_cvt_pk_bf16_f32 v{44+4*f+p}, v{a}, v{b}")
        A(f"buffer_store_dwordx4 v[{44+4*f}:{47+4*f}], v6, s[40:43], s48 offen offset:{1024*f}")
    A("s_endpgm")
    A("Ldq_v:")
    srd(28, 6, 4194304)
    srd(32, 12, 16384)
    srd(36, 14, 16384)
    A("s_lshr_b32 s44, s20, 2")
    A("s_and_b32 s45, s20, 3")
    A("s_lshl_b32 s46, s44, 14")
    A("s_add_u32 s46, s46, s26")
    A("s_lshl_b32 s47, s45, 7")
    A("s_add_u32 s46, s46, s47")
    A("v_and_b32 v3, 7, v2")
    A("v_bfe_u32 v4, v2, 3, 2")
    A("v_lshrrev_b32 v5, 5, v2")
    A("v_lshlrev_b32 v7, 2, v4")
    A("v_lshl_add_u32 v7, v5, 4, v7")
    A("v_lshlrev_b32 v6, 9, v7")
    A("v_lshl_add_u32 v6, v3, 4, v6")
    A("v_lshlrev_b32 v7, 1, v7")
    A("s_lshl_b32 s47, s22, 12")
    A("s_lshl_b32 s48, s24, 7")
    A("s_add_u32 s47, s47, s48")
    A("s_lshl_b32 s48, s44, 6")
    A("s_add_u32 s47, s47, s48")
    for r in range(4):
        A(f"buffer_load_dwordx4 v[{8+4*r}:{11+4*r}], v6, s[28:31], s46 offen offset:{512*r}")
    A("buffer_load_dwordx2 v[24:25], v7, s[32:35], s47 offen")
    A("buffer_load_dwordx2 v[26:27], v7, s[36:39], s47 offen")
    A("v_and_b32 v28, 1, v3")
    A("v_lshlrev_b32 v28, 10, v28")
    A("v_lshl_add_u32 v28, v4, 8, v28")
    A("v_lshrrev_b32 v29, 1, v3")
    A("v_lshl_add_u32 v28, v29, 6, v28")
    A("v_lshl_add_u32 v28, v5, 3, v28")
    A("s_lshl_b32 s48, s20, 11")
    A("s_add_u32 s48, s48, s25")
    A("s_add_u32 s48, s48, 16384")
    A("s_waitcnt vmcnt(0)")
    for h in range(2):
        A(f"v_lshlrev_b32 v{30+2*h}, 16, v{24+h}")
        A(f"v_and_b32 v{31+2*h}, 0xffff0000, v{24+h}")
        A(f"v_lshlrev_b32 v{34+2*h}, 16, v{26+h}")
        A(f"v_and_b32 v{35+2*h}, 0xffff0000, v{26+h}")
    for i in range(4):
        for h in range(2):
            a, b = 8 + 4 * (2 * h) + i, 8 + 4 * (2 * h + 1) + i
            A(f"v_cvt_f32_i32 v{a}, v{a}")
            A(f"v_cvt_f32_i32 v{b}, v{b}")
            round_pair(a, b, 40)
            A(f"v_sub_f32 v{a}, v{a}, v{34+2*h}")
            A(f"v_sub_f32 v{b}, v{b}, v{35+2*h}")
            round_pair(a, b, 40)
            A(f"v_mul_f32 v{a}, v{a}, v{30+2*h}")
            A(f"v_mul_f32 v{b}, v{b}, v{31+2*h}")
            A(f"v_cvt_pk_bf16_f32 v{44+2*i+h}, v{a}, v{b}")
        A(f"buffer_store_dwordx2 v[{44+2*i}:{45+2*i}], v28, s[40:43], s48 offen offset:{16*i}")
    A("Ldq_done:")
    A("s_endpgm")


NW = o.NW
QR = 256 // NW
NQB = QR // 16
NF = o.NF
DMAB = 16384 // NW
ND = DMAB // 1024
NT = 32

V_KB, V_VB, V_DMA, V_P16, V_P32, V_QO = 1, 2, 3, 4, 5, 6
V_R = 8
V_L = V_R + NQB
V_T = V_L + NQB
V_T = (V_T + 3) // 4 * 4
NTMP = 8
V_C = V_T + NTMP
V_S = V_C + 4 * NQB
V_P = V_S + 2 * 16 * NQB
V_END = V_P + 2 * 8 * NQB
AO = (V_END + 3) // 4 * 4
A_O = 0
A_Q = A_O + 32 * NQB
A_F = A_Q + 16 * NQB
A_END = A_F + 4 * NF
NVGPR = AO + A_END
assert NVGPR <= (512 if NW == 4 else 256), NVGPR


def Sreg(buf, kb, qb, i=None):
    b = V_S + buf * 16 * NQB + (kb * NQB + qb) * 4
    return f"v[{b}:{b+3}]" if i is None else f"v{b+i}"


def Preg(buf, ks, qb, i=None):
    b = V_P + buf * 8 * NQB + (ks * NQB + qb) * 4
    return f"v[{b}:{b+3}]" if i is None else f"v{b+i}"


def Creg(qb, i=None):
    b = V_C + 4 * qb
    return f"v[{b}:{b+3}]" if i is None else f"v{b+i}"


def Oreg(db, qb, i=None):
    b = A_O + (db * NQB + qb) * 4
    return f"a[{b}:{b+3}]" if i is None else f"a{b+i}"


def Qreg(qb, ds):
    b = A_Q + (qb * 4 + ds) * 4
    return f"a[{b}:{b+3}]"


def Freg(n):
    b = A_F + (n % NF) * 4
    return f"a[{b}:{b+3}]"


MF = "v_mfma_f32_16x16x32_bf16"
S_WAVE, S_WOFF, S_KOFF, S_VOFF, S_CNT, S_THR = 16, 17, 18, 19, 20, 21
S_RET = 22


class Frag:
    def __init__(self):
        self.n_issued = 0
        self.n_used = 0


def frag_read(kind, tile, idx, n):
    slot = tile % 4
    base = V_KB if kind == "K" else V_VB
    return f"ds_read_b128 {Freg(n)}, v{base} offset:{slot*16384 + idx*1024}"


def dma_ops(kind, tile):
    slot = tile % 4
    ldsbase = (0 if kind == "K" else 65536) + slot * 16384
    so = S_KOFF if kind == "K" else S_VOFF
    ops = []
    for i in range(ND):
        g = []
        if i % 4 == 0:
            g.append(f"s_add_u32 m0, s{S_WOFF}, {ldsbase + i*1024}")
            g.append("s_nop 0")
        g.append(f"buffer_load_dwordx4 v{V_DMA}, s[8:11], s{so} offen offset:{(i%4)*1024} lds")
        if i == ND - 1:
            g.append(f"s_add_u32 s{so}, s{so}, 32768")
        ops.append(g)
    return ops


def softmax_ops(sbuf, pbuf, sub=None):
    ops = []
    tcount = [0]

    def tmp():
        t = V_T + (tcount[0] % NTMP)
        tcount[0] += 1
        return t
    pend = []
    first = [True] * NQB
    for kb in range(4):
        for qb in range(NQB):
            for h in range(2):
                t0, t1 = tmp(), tmp()
                ops.append((8, f"v_exp_f32 v{t0}, {Sreg(sbuf, kb, qb, 2*h)}"))
                if pend:
                    ops.append(pend.pop(0))
                ops.append((8, f"v_exp_f32 v{t1}, {Sreg(sbuf, kb, qb, 2*h+1)}"))
                while pend:
                    ops.append(pend.pop(0))
                r = V_R + qb
                if first[qb]:
                    pend.append((4, f"v_add_f32 v{r}, v{t0}, v{t1}"))
                    first[qb] = False
                else:
                    pend.append((4, f"v_add_f32 v{r}, v{r}, v{t0}"))
                    pend.append((4, f"v_add_f32 v{r}, v{r}, v{t1}"))
                pend.append((4, f"v_cvt_pk_bf16_f32 {Preg(pbuf, kb//2, qb, (kb%2)*2+h)}, v{t0}, v{t1}"))
    ops.append((4, "s_nop 0"))
    ops += pend
    return ops


def check_ops():
    ops = []
    if NQB == 2:
        ops.append((4, f"v_max_f32 v{V_T}, v{V_R}, v{V_R+1}"))
    else:
        ops.append((4, f"v_max3_f32 v{V_T}, v{V_R}, v{V_R+1}, v{V_R+2}"))
        ops.append((4, f"v_max_f32 v{V_T}, v{V_T}, v{V_R+3}"))
    ops.append((4, f"v_cmp_nge_f32 vcc, s{S_THR}, v{V_T}"))
    return ops


tramps = []


def emit_iter(j, fr, do_pv=True, do_qk=True, do_sm=True, first_pv=False, dma=(), nxt=(), vm_wait=None, tag=""):
    frags = []
    if do_pv:
        frags += [("V", j, i) for i in range(16)]
    if do_qk:
        frags += [("K", j + 2, i) for i in range(16)]
    allf = frags + list(nxt)
    base_n = fr.n_used
    nslots = len(frags) * NQB
    fill = []
    if do_sm:
        fill += softmax_ops((j + 1) % 2, (j + 1) % 2)
        fill += check_ops()
    total = sum(c for c, _ in fill)
    last_fill_slot = nslots - o.vend
    per = total / max(1, last_fill_slot)
    dmag = []
    for (k, t) in dma:
        dmag += dma_ops(k, t)
    dma_slots = {o.dmapos + i * o.dmastep * NQB // 2: g for i, g in enumerate(dmag)}
    RA = NF - 1
    bar_frag = len(frags) - RA - o.barlead
    acc = 0.0
    fi = 0
    for f, (kind, tile, idx) in enumerate(frags):
        n = base_n + f
        if vm_wait is not None and f == bar_frag:
            A(f"s_waitcnt vmcnt({vm_wait})")
            A("s_barrier")
        while fr.n_issued <= n + RA and (fr.n_issued - base_n) < len(allf):
            k2, t2, i2 = allf[fr.n_issued - base_n]
            A(frag_read(k2, t2, i2, fr.n_issued))
            fr.n_issued += 1
        if not (o.wpair and (n % 2 == 1)):
            need = min(n + 1, fr.n_issued - 1) if o.wpair else n
            A(f"s_waitcnt lgkmcnt({fr.n_issued - 1 - need})")
        for qb in range(NQB):
            s = f * NQB + qb
            if kind == "V":
                ks, db = idx // 8, idx % 8
                c = "0" if (first_pv and ks == 0) else Oreg(db, qb)
                A(f"{MF} {Oreg(db, qb)}, {Freg(n)}, {Preg(j % 2, ks, qb)}, {c}")
            else:
                kb, ds = idx // 4, idx % 4
                sb = (j + 2) % 2
                c = Creg(qb) if ds == 0 else Sreg(sb, kb, qb)
                A(f"{MF} {Sreg(sb, kb, qb)}, {Freg(n)}, {Qreg(qb, ds)}, {c}")
            acc += per
            while fi < len(fill) and (acc >= fill[fi][0] * 0.5 or s >= last_fill_slot):
                acc -= fill[fi][0]
                A(fill[fi][1])
                fi += 1
            if s in dma_slots:
                for ins in dma_slots[s]:
                    A(ins)
    fr.n_used += len(frags)
    while fi < len(fill):
        A(fill[fi][1])
        fi += 1
    if do_sm:
        lab = f"Ltr_{tag}{j+1}"
        A(f"s_cbranch_vccnz {lab}")
        A(f"Lbk_{tag}{j+1}:")
        tramps.append((lab, f"Lbk_{tag}{j+1}", (j + 1) % 2))
        for qb in range(NQB):
            A(f"v_add_f32 v{V_L+qb}, v{V_L+qb}, v{V_R+qb}")


def xlane(op, reg, t):
    A("s_nop 1")
    A(f"ds_bpermute_b32 v{t}, v{V_P16}, v{reg}")
    A("s_waitcnt lgkmcnt(0)")
    A(f"{op} v{reg}, v{reg}, v{t}")
    A("s_nop 1")
    A(f"ds_bpermute_b32 v{t}, v{V_P32}, v{reg}")
    A("s_waitcnt lgkmcnt(0)")
    A(f"{op} v{reg}, v{reg}, v{t}")


def tile_max(sbuf, qb, dst):
    regs = [Sreg(sbuf, kb, qb, i) for kb in range(4) for i in range(4)]
    A(f"v_max3_f32 v{dst}, {regs[0]}, {regs[1]}, {regs[2]}")
    for k in range(3, 15, 2):
        A(f"v_max3_f32 v{dst}, v{dst}, {regs[k]}, {regs[k+1]}")
    A(f"v_max_f32 v{dst}, v{dst}, {regs[15]}")


def gen_rare(par):
    A(f"Lrare_{par}:")
    A("s_nop 7")
    A("s_nop 7")
    for qb in range(NQB):
        d, f, t = V_T, V_T + 1, V_T + 2
        tile_max(par, qb, d)
        xlane("v_max_f32", d, t)
        A(f"v_max_f32 v{d}, 0, v{d}")
        A(f"v_exp_f32 v{f}, -v{d}")
        A("s_nop 0")
        A(f"v_mul_f32 v{V_L+qb}, v{V_L+qb}, v{f}")
        for db in range(8):
            for i in range(4):
                A(f"v_accvgpr_read_b32 v{t+i}, {Oreg(db, qb, i)}")
            for i in range(4):
                A(f"v_mul_f32 v{t+i}, v{t+i}, v{f}")
            for i in range(4):
                A(f"v_accvgpr_write_b32 {Oreg(db, qb, i)}, v{t+i}")
        for buf in range(2):
            for kb in range(4):
                for i in range(4):
                    A(f"v_sub_f32 {Sreg(buf, kb, qb, i)}, {Sreg(buf, kb, qb, i)}, v{d}")
        for i in range(4):
            A(f"v_sub_f32 {Creg(qb, i)}, {Creg(qb, i)}, v{d}")
    for _, ins in softmax_ops(par, par):
        A(ins)
    A("s_nop 3")
    A(f"s_setpc_b64 s[{S_RET}:{S_RET+1}]")


def stamp(k):
    if not o.stamp:
        return
    A(f"s_memtime s[{40+2*k}:{41+2*k}]")


def gen_attn(name):
    kernel_begin(name)
    A("s_cmp_ge_u32 s2, 256")
    A("s_cbranch_scc1 Lat_done")
    stamp(0)
    A("s_load_dwordx2 s[24:25], s[0:1], 0")
    A("s_load_dwordx2 s[26:27], s[0:1], 56")
    A("s_load_dwordx2 s[28:29], s[0:1], 72")
    A("s_load_dwordx2 s[34:35], s[0:1], 64")
    A("v_lshrrev_b32 v7, 6, v0")
    A("v_and_b32 v0, 63, v0")
    A(f"v_readfirstlane_b32 s{S_WAVE}, v7")
    A("s_and_b32 s30, s2, 7")
    A("s_lshr_b32 s31, s30, 1")
    A("s_and_b32 s30, s30, 1")
    A("s_lshl_b32 s30, s30, 5")
    A("s_lshr_b32 s32, s2, 3")
    A("s_add_u32 s30, s30, s32")
    A("s_lshl_b32 s32, s31, 6")
    A("s_add_u32 s30, s30, s32")
    A("s_lshl_b32 s30, s30, 16")
    A(f"s_mul_i32 s{S_WOFF}, s{S_WAVE}, {DMAB}")
    A(f"s_mul_i32 s33, s{S_WAVE}, {QR*256}")
    A("s_add_u32 s30, s30, s33")
    A(f"v_lshlrev_b32 v{V_KB}, 4, v0")
    A(f"v_add_u32 v{V_VB}, 0x10000, v{V_KB}")
    A(f"v_add_u32 v{V_DMA}, s{S_WOFF}, v{V_KB}")
    A(f"v_xor_b32 v{V_P16}, 16, v0")
    A(f"v_lshlrev_b32 v{V_P16}, 2, v{V_P16}")
    A(f"v_xor_b32 v{V_P32}, 32, v0")
    A(f"v_lshlrev_b32 v{V_P32}, 2, v{V_P32}")
    A(f"v_and_b32 v{V_QO}, 15, v0")
    A(f"v_lshlrev_b32 v{V_QO}, 8, v{V_QO}")
    A("v_lshrrev_b32 v7, 4, v0")
    A(f"v_lshl_add_u32 v{V_QO}, v7, 4, v{V_QO}")
    A(f"s_mov_b32 s{S_THR}, 0x{f32bits(2.0**o.THRLOG):08x}")
    A(f"s_lshl_b32 s{S_KOFF}, s31, 20")
    A(f"s_add_u32 s{S_VOFF}, s{S_KOFF}, 16384")
    A("s_waitcnt lgkmcnt(0)")
    srd(4, 24, 16777216)
    srd(8, 28, 4194304)
    srd(12, 26, 16777216)
    def dma_all(kind, tile):
        for g in dma_ops(kind, tile):
            for ins in g:
                A(ins)
    dma_all("K", 0)
    for qb in range(NQB):
        A(f"s_add_u32 s33, s30, {qb*4096}")
        for ds in range(4):
            A(f"buffer_load_dwordx4 {Qreg(qb, ds)}, v{V_QO}, s[4:7], s33 offen offset:{ds*64}")
    dma_all("K", 1)
    dma_all("V", 0)
    dma_all("K", 2)
    dma_all("V", 1)
    dma_all("K", 3)
    dma_all("V", 2)
    for qb in range(NQB):
        A(f"v_mov_b32 v{V_L+qb}, 0")
    for db in range(8):
        for qb in range(NQB):
            for i in range(4):
                A(f"v_accvgpr_write_b32 {Oreg(db, qb, i)}, 0")
    if o.prio:
        A(f"s_cmp_ge_u32 s{S_WAVE}, 4")
        A("s_cbranch_scc0 Lprio_done")
        A("s_setprio 1")
        A("Lprio_done:")
    A(f"s_waitcnt vmcnt({5*ND})")
    A("s_barrier")
    stamp(1)
    fr = Frag()
    frs = [("K", 0, i) for i in range(16)] + [("K", 1, i) for i in range(16)]
    RA = NF - 1
    for f in range(16):
        while fr.n_issued <= f + RA:
            k2, t2, i2 = frs[fr.n_issued]
            A(frag_read(k2, t2, i2, fr.n_issued))
            fr.n_issued += 1
        A(f"s_waitcnt lgkmcnt({fr.n_issued - 1 - f})")
        kb, ds = f // 4, f % 4
        for qb in range(NQB):
            c = "0" if ds == 0 else Sreg(0, kb, qb)
            A(f"{MF} {Sreg(0, kb, qb)}, {Freg(f)}, {Qreg(qb, ds)}, {c}")
    fr.n_used = 16
    A("s_nop 7")
    A("s_nop 3")
    for qb in range(NQB):
        d, t = V_T, V_T + 2
        tile_max(0, qb, d)
        xlane("v_max_f32", d, t)
        for i in range(4):
            A(f"v_sub_f32 {Creg(qb, i)}, 0, v{d}")
        for kb in range(4):
            for i in range(4):
                A(f"v_sub_f32 {Sreg(0, kb, qb, i)}, {Sreg(0, kb, qb, i)}, v{d}")
    A("s_nop 1")
    emit_iter(-1, fr, do_pv=False, nxt=[("V", 0, i) for i in range(16)], vm_wait=3 * ND, tag="p")
    stamp(2)
    A(f"s_mov_b32 s{S_CNT}, 7")
    A(".p2align 6")
    A("Lloop:")
    st = (fr.n_issued - fr.n_used, fr.n_used % NF)
    for j in range(4):
        emit_iter(j, fr, dma=[("V", j + 3), ("K", j + 4)], nxt=[("V", j + 1, i) for i in range(16)],
                  vm_wait=2 * ND, tag="l")
    assert st == (fr.n_issued - fr.n_used, fr.n_used % NF), (st, fr.n_issued - fr.n_used, fr.n_used % NF)
    A(f"s_sub_u32 s{S_CNT}, s{S_CNT}, 1")
    A(f"s_cmp_lg_u32 s{S_CNT}, 0")
    A("s_cbranch_scc1 Lloop")
    stamp(3)
    emit_iter(28, fr, dma=[("V", 31)], nxt=[("V", 29, i) for i in range(16)], vm_wait=ND, tag="t")
    emit_iter(29, fr, nxt=[("V", 30, i) for i in range(16)], vm_wait=0, tag="t")
    emit_iter(30, fr, do_qk=False, nxt=[("V", 31, i) for i in range(16)], vm_wait=None, tag="t")
    A("s_nop 1")
    emit_iter(31, fr, do_qk=False, do_sm=False, tag="t")
    stamp(4)
    A("s_nop 7")
    for qb in range(NQB):
        xlane("v_add_f32", V_L + qb, V_T)
        A(f"v_rcp_f32 v{V_L+qb}, v{V_L+qb}")
    for qb in range(NQB):
        A(f"s_add_u32 s33, s30, {qb*4096}")
        for n in range(4):
            b = V_S + ((qb * 4 + n) % 4) * 12
            for k in range(8):
                A(f"v_accvgpr_read_b32 v{b+k}, {Oreg(2*n + k//4, qb, k%4)}")
            for k in range(8):
                A(f"v_mul_f32 v{b+k}, v{b+k}, v{V_L+qb}")
            for k in range(4):
                A(f"v_cvt_pk_bf16_f32 v{b+8+k}, v{b+2*k}, v{b+2*k+1}")
            A(f"buffer_store_dwordx4 v[{b+8}:{b+11}], v{V_QO}, s[12:15], s33 offen offset:{n*64}")
    if o.stamp:
        A("s_waitcnt vmcnt(0)")
        stamp(5)
        A("s_memrealtime s[52:53]")
        A("s_waitcnt lgkmcnt(0)")
        A("s_cmp_ge_u32 s2, 4")
        A("s_cbranch_scc1 Lat_done")
        A(f"s_cmp_lg_u32 s{S_WAVE}, 0")
        A("s_cbranch_scc1 Lat_done")
        srd(56, 34, 256)
        A("s_lshl_b32 s3, s2, 5")
        A("v_mov_b32 v16, s3")
        for k in range(1, 6):
            A(f"s_sub_u32 s60, s{40+2*k}, s40")
            A(f"v_mov_b32 v{8+k}, s60")
        A("v_mov_b32 v8, 0")
        A("v_mov_b32 v14, 0")
        A("v_mov_b32 v15, 0")
        A("v_cmp_eq_u32 vcc, 0, v0")
        A("s_and_saveexec_b64 s[62:63], vcc")
        A("buffer_store_dwordx4 v[8:11], v16, s[56:59], 0 offen")
        A("buffer_store_dwordx4 v[12:15], v16, s[56:59], 0 offen offset:16")
    A("Lat_done:")
    A("s_endpgm")
    for lab, back, par in tramps:
        A(f"{lab}:")
        A(f"s_call_b64 s[{S_RET}:{S_RET+1}], Lrare_{par}")
        A(f"s_branch {back}")
    gen_rare(0)
    gen_rare(1)


L.append(HEADER.rstrip())
A("; @launch kernel=dequant_kernel grid=(256,1,1) block=(512,1,1) lds=0")
A(f"; @launch kernel={KN} grid=(256,1,1) block=({NW*64},1,1) lds=131072")
A('.amdgcn_target "amdgcn-amd-amdhsa--gfx950"')
A(".text")
gen_dequant("dequant_kernel")
gen_attn(KN)
A('.section .rodata,"a"')
descriptor("dequant_kernel", 56, 64, 56, [".amdhsa_float_denorm_mode_32 3"])
descriptor(KN, NVGPR, 72, AO)
open(out, "w").write("\n".join(L) + "\n")
print(f"NW={NW} NQB={NQB} arch={V_END} AO={AO} acc={A_END} total={NVGPR} lines={len(L)}")
```
